```python
import torch

def _softmax(x, axis=-1):
    return torch.softmax(x, dim=axis)
def _gelu(x):
    return torch.nn.functional.gelu(x, approximate="tanh")
def _silu(x):
    return torch.nn.functional.silu(x)
def _sigmoid(x):
    return torch.sigmoid(x)
def _layernorm(x, axis=-1, eps=1e-5):
    m = x.mean(dim=axis, keepdim=True)
    v = x.var(dim=axis, keepdim=True, unbiased=False)
    return (x - m) / torch.sqrt(v + eps)
def _scatter_add(tgt, idx, src, axis=0):
    return tgt.clone().index_add_(axis, idx, src)
def _segment_sum(src, seg, n):
    out = torch.zeros((n,) + src.shape[1:], dtype=src.dtype)
    return out.index_add_(0, seg, src)
def _pad(x, pw):
    flat = tuple(v for pair in reversed(pw) for v in pair)
    return torch.nn.functional.pad(x, flat)

kernel_name = 'parallel_sum__ssm_conv_s5__dense_activation_gelu__prompt'

def setup_inputs():

    _w = (lambda a: (lambda t: t.to(torch.bfloat16) if t.is_floating_point() else t)(torch.as_tensor(a)))
    def _A_setup():
        B, S, D = 1, 2048, 512
        P = D
        Lambda_re = -0.5 * (lambda _x: torch.exp(torch.as_tensor(_x)))((lambda *s: torch.randn(*s, dtype=torch.bfloat16) * 0.2)(P))
        Lambda_im = (lambda *s: torch.randn(*s, dtype=torch.bfloat16) * 0.8)(P) * 1.0
        B_re = (lambda *s: torch.randn(*s, dtype=torch.bfloat16) * 0.4)(P, D) * (D ** -0.5)
        B_im = (lambda *s: torch.randn(*s, dtype=torch.bfloat16) * 0.4)(P, D) * (D ** -0.5)
        C_re = (lambda *s: torch.randn(*s, dtype=torch.bfloat16) * 0.4)(D, P) * (P ** -0.5)
        C_im = (lambda *s: torch.randn(*s, dtype=torch.bfloat16) * 0.4)(D, P) * (P ** -0.5)
        log_dt = (lambda *s: torch.randn(*s, dtype=torch.bfloat16) * 0.2)(P) * 0.3 - 2.0
        Dskip = (lambda *s: torch.randn(*s, dtype=torch.bfloat16) * 0.05)(D)
        return {
            "x": _w((lambda *s: torch.randn(*s, dtype=torch.bfloat16) * 0.05)(B, S, D)),
            "Lambda_re": _w(Lambda_re),
            "Lambda_im": _w(Lambda_im),
            "B_re": _w(B_re),
            "B_im": _w(B_im),
            "C_re": _w(C_re),
            "C_im": _w(C_im),
            "log_dt": _w(log_dt),
            "Dskip": _w(Dskip),
        }
    _A_in = _A_setup()

    def _B_setup():
        B, S, D, F = 1, 2048, 512, 1792
        return {
            "x": _w((lambda *s: torch.randn(*s, dtype=torch.bfloat16) * 0.05)(B, S, D)),
            "w1": _w((lambda *s: torch.randn(*s, dtype=torch.bfloat16) * 0.8)(D, F) * (D ** -0.5)),
            "b1": _w((lambda *s: torch.randn(*s, dtype=torch.bfloat16) * 12.8)(F) * 0.01),
            "w2": _w((lambda *s: torch.randn(*s, dtype=torch.bfloat16) * 0.8)(F, D) * (F ** -0.5)),
            "b2": _w((lambda *s: torch.randn(*s, dtype=torch.bfloat16) * 12.8)(D) * 0.01),
        }
    _B_in = _B_setup()

    return {
        "A_x": _A_in["x"],
        "A_Lambda_re": _A_in["Lambda_re"],
        "A_Lambda_im": _A_in["Lambda_im"],
        "A_B_re": _A_in["B_re"],
        "A_B_im": _A_in["B_im"],
        "A_C_re": _A_in["C_re"],
        "A_C_im": _A_in["C_im"],
        "A_log_dt": _A_in["log_dt"],
        "A_Dskip": _A_in["Dskip"],
        "B_x": _B_in["x"],
        "B_w1": _B_in["w1"],
        "B_b1": _B_in["b1"],
        "B_w2": _B_in["w2"],
        "B_b2": _B_in["b2"],
    }

def reference(A_x, A_Lambda_re, A_Lambda_im, A_B_re, A_B_im, A_C_re, A_C_im, A_log_dt, A_Dskip, B_x, B_w1, B_b1, B_w2, B_b2):
    def _A_ref(x, Lambda_re, Lambda_im, B_re, B_im, C_re, C_im, log_dt, Dskip):
        Bsz, L, H = x.shape
        Lam = Lambda_re + 1j * Lambda_im
        Bmat = B_re + 1j * B_im
        Cmat = C_re + 1j * C_im
        dt = torch.exp(log_dt)
        Lam_bar = torch.exp(dt * Lam)
        B_bar = ((Lam_bar - 1.0) / Lam)[:, None] * Bmat
        Bu = torch.einsum("bld,pd->blp", x + 0j, B_bar)
        h = torch.zeros_like(Bu[:, 0, :])
        hs = []
        for t in range(L):
            h = Lam_bar[None, :] * h + Bu[:, t, :]
            hs.append(h)
        hseq = torch.stack(hs, 1)
        y = 2.0 * torch.einsum("blp,dp->bld", hseq, Cmat).real + x * Dskip[None, None, :]
        return y

    def _B_ref(x, w1, b1, w2, b2):
        h = torch.einsum("bsd,df->bsf", x, w1) + b1
        h = _gelu(h)
        return torch.einsum("bsf,fd->bsd", h, w2) + b2

    x = A_x
    xn = _layernorm(x, axis=-1)
    return x + _A_ref(xn, A_Lambda_re, A_Lambda_im, A_B_re, A_B_im, A_C_re, A_C_im, A_log_dt, A_Dskip) + _B_ref(xn, B_w1, B_b1, B_w2, B_b2)
```

```python
class Asm:
    def __init__(self):
        self.lines = []
        self._uid = 0
    def __call__(self, s):
        for l in s.strip("\n").split("\n"):
            self.lines.append("  " + l.strip())
    def label(self, l):
        self.lines.append(l + ":")
    def uid(self, p="L"):
        self._uid += 1
        return f"{p}_{self._uid}"
    def comment(self, s):
        self.lines.append("  ; " + s)
    def text(self):
        return "\n".join(self.lines) + "\n"

def kernel_begin(a, name):
    a.lines.append(f".globl {name}")
    a.lines.append(".p2align 8")
    a.lines.append(f".type {name},@function")
    a.lines.append(f"{name}:")

def kd(name, vgpr, sgpr=102, accum=None, wgy=False):
    if accum is None:
        accum = (min(vgpr,256) + 3)//4*4
    return f""".p2align 6
.amdhsa_kernel {name}
  .amdhsa_next_free_vgpr {vgpr}
  .amdhsa_next_free_sgpr {sgpr}
  .amdhsa_accum_offset {accum}
  .amdhsa_group_segment_fixed_size 0
  .amdhsa_kernarg_size 136
  .amdhsa_user_sgpr_count 2
  .amdhsa_user_sgpr_kernarg_segment_ptr 1
  .amdhsa_system_sgpr_workgroup_id_x 1
  .amdhsa_float_denorm_mode_32 3
  .amdhsa_float_denorm_mode_16_64 3
.end_amdhsa_kernel
"""

ARG = dict(x=0, lre=8, lim=16, bre=24, bim=32, cre=40, cim=48, ldt=56, dsk=64, bx=72, w1=80, b1=88, w2=96, b2=104, out=112, dbg=120, ws=128)

def srd(a, sd, sp, nbytes, off=0):
    if off:
        a(f"s_add_u32 s{sd}, s{sp}, {off}")
        a(f"s_addc_u32 s{sd+1}, s{sp+1}, 0")
        a(f"s_and_b32 s{sd+1}, s{sd+1}, 0xffff")
    else:
        a(f"s_mov_b32 s{sd}, s{sp}")
        a(f"s_and_b32 s{sd+1}, s{sp+1}, 0xffff")
    a(f"s_mov_b32 s{sd+2}, {nbytes}")
    a(f"s_mov_b32 s{sd+3}, 0x20000")
```

```python
import sys
from asmlib import *
XN=0; W1T=2<<20; W2T=5<<20; A2=8<<20; U=20<<20
LOG2E=0x3fb8aa3b
def f2u(f):
    import struct; return struct.unpack("<I", struct.pack("<f", f))[0]

def rne(a, dst, src, tmp=None):
    a(f"v_cvt_pk_bf16_f32 v{dst}, v{src}, v{src}")
    a(f"v_lshlrev_b32 v{dst}, 16, v{dst}")

def wave_allreduce(a, v, t, s0):
    for m in ("quad_perm:[1,0,3,2]","quad_perm:[2,3,0,1]","row_half_mirror","row_mirror"):
        a("s_nop 1")
        a(f"v_add_f32_dpp v{v}, v{v}, v{v} {m} row_mask:0xf bank_mask:0xf")
    a("s_nop 1")
    for j in range(4):
        a(f"v_readlane_b32 s{s0+j}, v{v}, {16*j}")
    a("s_nop 1")
    a(f"v_mov_b32 v{v}, s{s0}")
    a(f"v_add_f32 v{v}, s{s0+1}, v{v}")
    a(f"v_add_f32 v{v}, s{s0+2}, v{v}")
    a(f"v_add_f32 v{v}, s{s0+3}, v{v}")

def gen_ln(a):
    kernel_begin(a, "ln_kernel")
    a("s_cmp_ge_u32 s2, 512"); a("s_cbranch_scc1 ln_end")
    a(f"s_load_dwordx2 s[4:5], s[0:1], {ARG['x']}")
    a(f"s_load_dwordx2 s[6:7], s[0:1], {ARG['ws']}")
    a("v_lshrrev_b32 v1, 6, v0"); a("s_nop 0"); a("v_readfirstlane_b32 s20, v1")
    a("v_and_b32 v2, 63, v0"); a("v_lshlrev_b32 v2, 4, v2")
    a("s_lshl_b32 s21, s2, 2"); a("s_add_u32 s21, s21, s20"); a("s_lshl_b32 s21, s21, 10")
    a("s_waitcnt lgkmcnt(0)")
    srd(a, 8, 4, 2<<20)
    srd(a, 12, 6, 2<<20, off=XN)
    a("buffer_load_dwordx4 v[4:7], v2, s[8:11], s21 offen")
    a("s_waitcnt vmcnt(0)")
    for j in range(4):
        a(f"v_lshlrev_b32 v{8+2*j}, 16, v{4+j}")
        a(f"v_and_b32 v{9+2*j}, 0xffff0000, v{4+j}")
    a("v_add_f32 v16, v8, v9")
    for j in range(2,8): a(f"v_add_f32 v16, v16, v{8+j}")
    wave_allreduce(a, 16, 17, 24)
    a(f"v_mul_f32 v16, {f2u(1/512):#x}, v16")
    a("v_mov_b32 v18, 0")
    for j in range(8):
        a(f"v_sub_f32 v19, v{8+j}, v16")
        a("v_fmac_f32 v18, v19, v19")
    wave_allreduce(a, 18, 17, 24)
    a(f"v_mul_f32 v18, {f2u(1/512):#x}, v18")
    rne(a, 16, 16)
    rne(a, 18, 18)
    a(f"v_add_f32 v18, {f2u(1e-5):#x}, v18")
    rne(a, 18, 18)
    a("v_sqrt_f32 v18, v18"); a("s_nop 0")
    rne(a, 18, 18)
    a("v_rcp_f32 v18, v18"); a("s_nop 0")
    for j in range(8):
        a(f"v_sub_f32 v{8+j}, v{8+j}, v16")
        rne(a, 8+j, 8+j)
        a(f"v_mul_f32 v{8+j}, v{8+j}, v18")
    for j in range(4):
        a(f"v_cvt_pk_bf16_f32 v{4+j}, v{8+2*j}, v{9+2*j}")
    a("buffer_store_dwordx4 v[4:7], v2, s[12:15], s21 offen")
    a.label("ln_end"); a("s_endpgm")

def gen_tr(a):
    kernel_begin(a, "tr_kernel")
    a("s_cmp_ge_u32 s2, 11264"); a("s_cbranch_scc1 tr_end")
    a(f"s_load_dwordx2 s[4:5], s[0:1], {ARG['w1']}")
    a(f"s_load_dwordx2 s[6:7], s[0:1], {ARG['bre']}")
    a(f"s_load_dwordx2 s[8:9], s[0:1], {ARG['bim']}")
    a(f"s_load_dwordx2 s[10:11], s[0:1], {ARG['w2']}")
    a(f"s_load_dwordx2 s[12:13], s[0:1], {ARG['cre']}")
    a(f"s_load_dwordx2 s[14:15], s[0:1], {ARG['cim']}")
    a(f"s_load_dwordx2 s[16:17], s[0:1], {ARG['ws']}")
    a("s_waitcnt lgkmcnt(0)")
    a("s_cmp_ge_u32 s2, 5632"); a("s_cbranch_scc1 tr_part2")
    a("s_lshr_b32 s20, s2, 1")
    a("s_and_b32 s21, s2, 1"); a("s_lshl_b32 s21, s21, 8")
    a("v_add_u32 v1, s21, v0")
    a("s_lshl_b32 s22, s20, 10"); a(f"s_add_u32 s22, s22, {W1T}")
    a("v_lshlrev_b32 v3, 1, v1"); a("v_add_u32 v3, s22, v3")
    a("s_cmp_ge_u32 s20, 1792"); a("s_cbranch_scc1 tr_p1b")
    a("s_mov_b32 s23, 3584"); a("v_mul_lo_u32 v2, v1, s23"); a("s_lshl_b32 s24, s20, 1"); a("v_add_u32 v2, s24, v2")
    a("s_mov_b64 s[18:19], s[4:5]"); a("s_branch tr_do")
    a.label("tr_p1b")
    a("s_cmp_ge_u32 s20, 2304"); a("s_cbranch_scc1 tr_p1c")
    a("s_sub_u32 s24, s20, 1792"); a("s_lshl_b32 s24, s24, 10"); a("v_lshlrev_b32 v2, 1, v1"); a("v_add_u32 v2, s24, v2")
    a("s_mov_b64 s[18:19], s[6:7]"); a("s_branch tr_do")
    a.label("tr_p1c")
    a("s_sub_u32 s24, s20, 2304"); a("s_lshl_b32 s24, s24, 10"); a("v_lshlrev_b32 v2, 1, v1"); a("v_add_u32 v2, s24, v2")
    a("s_mov_b64 s[18:19], s[8:9]"); a("s_branch tr_do")
    a.label("tr_part2")
    a("s_sub_u32 s20, s2, 5632")
    a(f"s_mul_hi_u32 s21, s20, {(1<<32)//11+1}")
    a("s_mul_i32 s22, s21, 11"); a("s_sub_u32 s22, s20, s22")
    a("s_lshl_b32 s23, s22, 8"); a("v_add_u32 v1, s23, v0")
    a("s_mul_i32 s24, s21, 5632"); a(f"s_add_u32 s24, s24, {W2T}")
    a("v_lshlrev_b32 v3, 1, v1"); a("v_add_u32 v3, s24, v3")
    a("s_cmp_ge_u32 s22, 7"); a("s_cbranch_scc1 tr_p2b")
    a("v_lshlrev_b32 v2, 10, v1"); a("s_lshl_b32 s24, s21, 1"); a("v_add_u32 v2, s24, v2")
    a("s_mov_b64 s[18:19], s[10:11]"); a("s_branch tr_do")
    a.label("tr_p2b")
    a("s_cmp_ge_u32 s22, 9"); a("s_cbranch_scc1 tr_p2c")
    a("v_subrev_u32 v2, 1792, v1"); a("v_lshlrev_b32 v2, 1, v2"); a("s_lshl_b32 s24, s21, 10"); a("v_add_u32 v2, s24, v2")
    a("s_mov_b64 s[18:19], s[12:13]"); a("s_branch tr_do")
    a.label("tr_p2c")
    a("v_subrev_u32 v2, 2304, v1"); a("v_lshlrev_b32 v2, 1, v2"); a("s_lshl_b32 s24, s21, 10"); a("v_add_u32 v2, s24, v2")
    a("s_mov_b64 s[18:19], s[14:15]")
    a.label("tr_do")
    a("global_load_ushort v4, v2, s[18:19]")
    a("s_waitcnt vmcnt(0)")
    a("global_store_short v3, v4, s[16:17]")
    a.label("tr_end"); a("s_endpgm")

def gelu(a, v, t1, t2):
    c0 = 2*0.7978845608028654*1.4426950408889634
    c1 = c0*0.044715
    a(f"v_mul_f32 v{t1}, v{v}, v{v}")
    a(f"v_mov_b32 v{t2}, {f2u(-c0):#x}")
    a(f"v_fmac_f32 v{t2}, {f2u(-c1):#x}, v{t1}")
    a(f"v_mul_f32 v{t2}, v{t2}, v{v}")
    a(f"v_exp_f32 v{t2}, v{t2}"); a("s_nop 0")
    a(f"v_add_f32 v{t2}, 1.0, v{t2}")
    a(f"v_rcp_f32 v{t2}, v{t2}"); a("s_nop 0")
    a(f"v_mul_f32 v{v}, v{v}, v{t2}")

def gen_gemm(a, name, which):
    sA = 1024 if which==1 else 5632
    K = 512 if which==1 else 2816
    NT = 88 if which==1 else 16
    kernel_begin(a, name)
    a(f"s_cmp_ge_u32 s2, {64*NT}"); a(f"s_cbranch_scc1 {name}_end")
    a(f"s_load_dwordx2 s[4:5], s[0:1], {ARG['ws']}")
    a(f"s_load_dwordx2 s[6:7], s[0:1], {ARG['b1'] if which==1 else ARG['b2']}")
    a(f"s_load_dwordx2 s[28:29], s[0:1], {ARG['out']}")
    a(f"s_load_dwordx2 s[30:31], s[0:1], {ARG['x']}")
    a(f"s_load_dwordx2 s[32:33], s[0:1], {ARG['dsk']}")
    a(f"s_mul_hi_u32 s20, s2, {(1<<32)//NT+1}")
    a(f"s_mul_i32 s21, s20, {NT}"); a("s_sub_u32 s21, s2, s21")
    a("s_lshl_b32 s20, s20, 5"); a("s_lshl_b32 s21, s21, 5")
    a("v_and_b32 v1, 15, v0"); a("v_lshrrev_b32 v2, 4, v0")
    a("s_waitcnt lgkmcnt(0)")
    if which==1:
        srd(a, 8, 4, 2<<20, off=XN); srd(a, 12, 4, 2816*1024, off=W1T)
    else:
        srd(a, 8, 4, 2048*5632, off=A2); srd(a, 12, 4, 512*5632, off=W2T)
    a(f"s_mov_b32 s22, {sA}")
    a("v_add_u32 v3, s20, v1"); a("v_mul_lo_u32 v3, v3, s22"); a("v_lshlrev_b32 v4, 4, v2"); a("v_add_u32 v3, v3, v4")
    a(f"v_add_u32 v5, {16*sA}, v3")
    a("v_add_u32 v6, s21, v1"); a("v_mul_lo_u32 v6, v6, s22"); a("v_add_u32 v6, v6, v4")
    a(f"v_add_u32 v7, {16*sA}, v6")
    for r in range(40,56): a(f"v_mov_b32 v{r}, 0")
    a("s_mov_b32 s23, 0")
    a.label(f"{name}_loop")
    a("buffer_load_dwordx4 v[8:11], v3, s[8:11], s23 offen")
    a("buffer_load_dwordx4 v[12:15], v5, s[8:11], s23 offen")
    a("buffer_load_dwordx4 v[16:19], v6, s[12:15], s23 offen")
    a("buffer_load_dwordx4 v[20:23], v7, s[12:15], s23 offen")
    a("buffer_load_dwordx4 v[24:27], v3, s[8:11], s23 offen offset:64")
    a("buffer_load_dwordx4 v[28:31], v5, s[8:11], s23 offen offset:64")
    a("buffer_load_dwordx4 v[32:35], v6, s[12:15], s23 offen offset:64")
    a("buffer_load_dwordx4 v[36:39], v7, s[12:15], s23 offen offset:64")
    a("s_waitcnt vmcnt(4)")
    a("v_mfma_f32_16x16x32_bf16 v[40:43], v[8:11], v[16:19], v[40:43]")
    a("v_mfma_f32_16x16x32_bf16 v[44:47], v[8:11], v[20:23], v[44:47]")
    a("v_mfma_f32_16x16x32_bf16 v[48:51], v[12:15], v[16:19], v[48:51]")
    a("v_mfma_f32_16x16x32_bf16 v[52:55], v[12:15], v[20:23], v[52:55]")
    a("s_waitcnt vmcnt(0)")
    a("v_mfma_f32_16x16x32_bf16 v[40:43], v[24:27], v[32:35], v[40:43]")
    a("v_mfma_f32_16x16x32_bf16 v[44:47], v[24:27], v[36:39], v[44:47]")
    a("v_mfma_f32_16x16x32_bf16 v[48:51], v[28:31], v[32:35], v[48:51]")
    a("v_mfma_f32_16x16x32_bf16 v[52:55], v[28:31], v[36:39], v[52:55]")
    a("s_add_u32 s23, s23, 128"); a(f"s_cmp_lt_u32 s23, {K*2}"); a(f"s_cbranch_scc1 {name}_loop")
    a("s_nop 15")
    a("v_lshlrev_b32 v3, 2, v2"); a("v_add_u32 v3, s20, v3")
    a("v_add_u32 v4, s21, v1")
    if which==1:
        a("s_cmp_ge_u32 s21, 1792"); a(f"s_cbranch_scc1 {name}_ssm")
        srd(a, 16, 4, 2048*5632, off=A2)
        a("v_lshlrev_b32 v5, 1, v4")
        a("global_load_ushort v8, v5, s[6:7]")
        a("global_load_ushort v9, v5, s[6:7] offset:32")
        a("s_mov_b32 s22, 5632")
        a("v_mul_lo_u32 v6, v3, s22"); a("v_add_u32 v6, v6, v5")
        a("s_waitcnt vmcnt(0)")
        a("v_lshlrev_b32 v8, 16, v8"); a("v_lshlrev_b32 v9, 16, v9")
        for mi in range(2):
            for ni in range(2):
                for r in range(4):
                    v = 40 + (mi*2+ni)*4 + r
                    rne(a, v, v)
                    a(f"v_add_f32 v{v}, v{v}, v{8+ni}")
                    rne(a, v, v)
                    gelu(a, v, 10, 11)
                    a(f"v_cvt_pk_bf16_f32 v{v}, v{v}, v{v}")
                    a(f"v_add_u32 v12, {(mi*16+r)*5632}, v6")
                    a(f"buffer_store_short v{v}, v12, s[16:19], 0 offen offset:{ni*32}")
        a("s_endpgm")
        a.label(f"{name}_ssm")
        srd(a, 16, 4, 2048*4096, off=U)
        a("v_subrev_u32 v5, 1792, v4"); a("v_lshlrev_b32 v5, 2, v5")
        a("v_lshlrev_b32 v6, 12, v3"); a("v_add_u32 v6, v6, v5")
        for mi in range(2):
            for ni in range(2):
                for r in range(4):
                    v = 40 + (mi*2+ni)*4 + r
                    a(f"v_add_u32 v12, {(mi*16+r)*4096}, v6")
                    a(f"buffer_store_dword v{v}, v12, s[16:19], 0 offen offset:{ni*64}")
    else:
        srd(a, 16, 28, 2048*2048)
        srd(a, 24, 30, 2<<20)
        srd(a, 8, 4, 2<<20, off=XN)
        a("v_lshlrev_b32 v5, 1, v4")
        a("global_load_ushort v8, v5, s[6:7]")
        a("global_load_ushort v9, v5, s[6:7] offset:32")
        a("global_load_ushort v10, v5, s[32:33]")
        a("global_load_ushort v11, v5, s[32:33] offset:32")
        a("v_lshlrev_b32 v6, 10, v3"); a("v_add_u32 v6, v6, v5")
        a("v_lshlrev_b32 v7, 11, v3"); a("v_lshlrev_b32 v13, 2, v4"); a("v_add_u32 v7, v7, v13")
        a("s_waitcnt vmcnt(0)")
        for r in (8,9,10,11): a(f"v_lshlrev_b32 v{r}, 16, v{r}")
        for mi in range(2):
            for ni in range(2):
                for r in range(4):
                    v = 40 + (mi*2+ni)*4 + r
                    a(f"v_add_u32 v12, {(mi*16+r)*1024}, v6")
                    a(f"buffer_load_ushort v14, v12, s[24:27], 0 offen offset:{ni*32}")
                    a(f"buffer_load_ushort v15, v12, s[8:11], 0 offen offset:{ni*32}")
                    a("s_waitcnt vmcnt(0)")
                    a("v_lshlrev_b32 v14, 16, v14"); a("v_lshlrev_b32 v15, 16, v15")
                    a(f"v_mul_f32 v15, v15, v{10+ni}")
                    rne(a, 15, 15)
                    a(f"v_add_f32 v{v}, v{v}, v{8+ni}")
                    a(f"v_add_f32 v{v}, v{v}, v15")
                    a(f"v_add_f32 v{v}, v{v}, v14")
                    a(f"v_add_u32 v12, {(mi*16+r)*2048}, v7")
                    a(f"buffer_store_dword v{v}, v12, s[16:19], 0 offen offset:{ni*64}")
    a.label(f"{name}_end"); a("s_endpgm")

def gen_scan(a):
    kernel_begin(a, "scan_kernel")
    a("s_cmp_ge_u32 s2, 8"); a("s_cbranch_scc1 scan_end")
    a(f"s_load_dwordx2 s[4:5], s[0:1], {ARG['ws']}")
    a(f"s_load_dwordx2 s[6:7], s[0:1], {ARG['lre']}")
    a(f"s_load_dwordx2 s[8:9], s[0:1], {ARG['lim']}")
    a(f"s_load_dwordx2 s[10:11], s[0:1], {ARG['ldt']}")
    a("s_lshl_b32 s20, s2, 6"); a("v_add_u32 v1, s20, v0")
    a("v_lshlrev_b32 v2, 1, v1")
    a("s_waitcnt lgkmcnt(0)")
    a("global_load_ushort v3, v2, s[6:7]"); a("global_load_ushort v4, v2, s[8:9]"); a("global_load_ushort v5, v2, s[10:11]")
    srd(a, 12, 4, 2048*4096, off=U); srd(a, 16, 4, 2048*5632, off=A2)
    a("s_waitcnt vmcnt(0)")
    for r in (3,4,5): a(f"v_lshlrev_b32 v{r}, 16, v{r}")
    a(f"v_mul_f32 v5, {LOG2E:#x}, v5"); a("v_exp_f32 v5, v5"); a("s_nop 0"); rne(a,5,5)
    a("v_mul_f32 v6, v5, v3"); a("v_mul_f32 v7, v5, v4")
    a(f"v_mul_f32 v6, {LOG2E:#x}, v6"); a("v_exp_f32 v6, v6")
    a(f"v_mul_f32 v7, {f2u(0.15915494309189535):#x}, v7"); a("v_fract_f32 v7, v7"); a("s_nop 0")
    a("v_cos_f32 v8, v7"); a("v_sin_f32 v9, v7"); a("s_nop 0")
    a("v_mul_f32 v8, v8, v6"); a("v_mul_f32 v9, v9, v6")
    a("v_subrev_f32 v10, 1.0, v8")
    a("v_mul_f32 v11, v3, v3"); a("v_fmac_f32 v11, v4, v4"); a("v_rcp_f32 v11, v11"); a("s_nop 0")
    a("v_add_f32 v11, v11, v11")
    a("v_mul_f32 v12, v10, v3"); a("v_fmac_f32 v12, v9, v4"); a("v_mul_f32 v12, v12, v11")
    a("v_mul_f32 v13, v9, v3"); a("v_mul_f32 v14, v10, v4"); a("v_sub_f32 v13, v13, v14"); a("v_mul_f32 v13, v13, v11")
    a("v_mov_b32 v14, 0"); a("v_mov_b32 v15, 0")
    a("v_lshlrev_b32 v16, 2, v1")
    a(f"v_add_u32 v17, {1792*2}, v2")
    a("s_mov_b32 s21, 0"); a("s_mov_b32 s22, 0")
    a.label("scan_loop")
    for j in range(8):
        a(f"s_add_u32 s23, s21, {j*4096}")
        a(f"buffer_load_dword v{20+2*j}, v16, s[12:15], s23 offen")
        a(f"buffer_load_dword v{21+2*j}, v16, s[12:15], s23 offen offset:2048")
    a("s_waitcnt vmcnt(0)")
    for j in range(8):
        a(f"v_fma_f32 v36, v8, v14, v{20+2*j}"); a("v_fma_f32 v36, -v9, v15, v36")
        a(f"v_fma_f32 v37, v8, v15, v{21+2*j}"); a("v_fma_f32 v15, v9, v14, v37"); a("v_mov_b32 v14, v36")
        a("v_mul_f32 v38, v12, v14"); a("v_fma_f32 v38, -v13, v15, v38")
        a("v_mul_f32 v39, v12, v15"); a("v_fma_f32 v39, v13, v14, v39"); a("v_sub_f32 v39, 0, v39")
        a("v_cvt_pk_bf16_f32 v38, v38, v38"); a("v_cvt_pk_bf16_f32 v39, v39, v39")
        a(f"s_add_u32 s23, s22, {j*5632}")
        a("buffer_store_short v38, v17, s[16:19], s23 offen")
        a("buffer_store_short v39, v17, s[16:19], s23 offen offset:1024")
        a("s_nop 1")
    a(f"s_add_u32 s21, s21, {8*4096}"); a(f"s_add_u32 s22, s22, {8*5632}")
    a(f"s_cmp_lt_u32 s21, {2048*4096}"); a("s_cbranch_scc1 scan_loop")
    a.label("scan_end"); a("s_endpgm")

def gen_pad(a, name, n):
    kernel_begin(a, name)
    for i in range(n): a(f"v_fma_f32 v{8+(i%16)}, v1, v2, v{8+(i%16)}")
    a("s_endpgm")

def build(extra_empty=0, pad=0):
    hdr = ["; @launch kernel=ln_kernel grid=(512,1,1) block=(256,1,1) lds=0",
           "; @launch kernel=tr_kernel grid=(11264,1,1) block=(256,1,1) lds=0",
           "; @launch kernel=gemm1_kernel grid=(5632,1,1) block=(64,1,1) lds=0",
           "; @launch kernel=scan_kernel grid=(8,1,1) block=(64,1,1) lds=0",
           "; @launch kernel=gemm2_kernel grid=(1024,1,1) block=(64,1,1) lds=0"]
    for i in range(extra_empty):
        hdr.append(f"; @launch kernel=pad{i}_kernel grid=(256,1,1) block=(256,1,1) lds=0")
    a = Asm()
    a.lines.append('.amdgcn_target "amdgcn-amd-amdhsa--gfx950"'); a.lines.append(".text")
    gen_ln(a); gen_tr(a); gen_gemm(a, "gemm1_kernel", 1); gen_scan(a); gen_gemm(a, "gemm2_kernel", 2)
    for i in range(extra_empty): gen_pad(a, f"pad{i}_kernel", pad)
    s = "\n".join(hdr) + "\n" + a.text() + '.section .rodata,"a"\n'
    for k in ("ln_kernel","tr_kernel","gemm1_kernel","scan_kernel","gemm2_kernel"):
        s += kd(k, 64, 64)
    for i in range(extra_empty): s += kd(f"pad{i}_kernel", 64, 64)
    return s
if __name__ == "__main__":
    open("v0.s","w").write(build())
    open("v0_e4.s","w").write(build(4, 0))
    open("v0_p1.s","w").write(build(1, 4096))
    open("v0_p0.s","w").write(build(1, 0))
```
